```python
import torch

def _softmax(x, axis=-1):
    return torch.softmax(x, dim=axis)
def _gelu(x):
    return torch.nn.functional.gelu(x, approximate="tanh")
def _silu(x):
    return torch.nn.functional.silu(x)
def _sigmoid(x):
    return torch.sigmoid(x)
def _layernorm(x, axis=-1, eps=1e-5):
    m = x.mean(dim=axis, keepdim=True)
    v = x.var(dim=axis, keepdim=True, unbiased=False)
    return (x - m) / torch.sqrt(v + eps)
def _scatter_add(tgt, idx, src, axis=0):
    return tgt.clone().index_add_(axis, idx, src)
def _segment_sum(src, seg, n):
    out = torch.zeros((n,) + src.shape[1:], dtype=src.dtype)
    return out.index_add_(0, seg, src)
def _pad(x, pw):
    flat = tuple(v for pair in reversed(pw) for v in pair)
    return torch.nn.functional.pad(x, flat)

kernel_name = 'sequential_preLN__softmax_full_mha__glu_gated_reglu__prompt'

def setup_inputs():

    _w = (lambda a: (lambda t: t.to(torch.bfloat16) if t.is_floating_point() else t)(torch.as_tensor(a)))
    def _A_setup():
        B, S, D = 1, 2048, 512
        return {
            "x": _w((lambda *s: torch.randn(*s, dtype=torch.bfloat16) * 0.05)(B, S, D)),
            "wqkv": _w((lambda *s: torch.randn(*s, dtype=torch.bfloat16) * 0.05)(D, 3 * D)),
            "wo": _w((lambda *s: torch.randn(*s, dtype=torch.bfloat16) * 0.05)(D, D)),
        }
    _A_in = _A_setup()

    def _B_setup():
        B, S, D, F = 1, 2048, 512, 1792
        return {
            "x": _w((lambda *s: torch.randn(*s, dtype=torch.bfloat16) * 0.05)(B, S, D)),
            "W_gate": _w((lambda *s: torch.randn(*s, dtype=torch.bfloat16) * 0.4)(D, F) * (2.0 / D) ** 0.5),
            "W_up": _w((lambda *s: torch.randn(*s, dtype=torch.bfloat16) * 0.4)(D, F) * (2.0 / D) ** 0.5),
            "W_down": _w((lambda *s: torch.randn(*s, dtype=torch.bfloat16) * 0.4)(F, D) * (1.0 / F) ** 0.5),
        }
    _B_in = _B_setup()

    return {
        "A_x": _A_in["x"],
        "A_wqkv": _A_in["wqkv"],
        "A_wo": _A_in["wo"],
        "B_x": _B_in["x"],
        "B_W_gate": _B_in["W_gate"],
        "B_W_up": _B_in["W_up"],
        "B_W_down": _B_in["W_down"],
    }

def reference(A_x, A_wqkv, A_wo, B_x, B_W_gate, B_W_up, B_W_down):
    def _A_ref(x, wqkv, wo):
        B, S, D = x.shape
        H = 32; Dh = D // H
        qkv = (lambda x, *d: x.permute(*d))((x @ wqkv).reshape(B, S, 3, H, Dh), 2, 0, 3, 1, 4)
        q, k, v = qkv[0], qkv[1], qkv[2]
        scale = Dh ** -0.5
        scores = torch.einsum("bhqd,bhkd->bhqk", q, k) * scale
        p = _softmax(scores, axis=-1)
        o = torch.einsum("bhqk,bhkd->bhqd", p, v)
        return (lambda x, *d: x.permute(*d))(o, 0, 2, 1, 3).reshape(B, S, D) @ wo

    def _B_ref(x, W_gate, W_up, W_down):
        gate = torch.einsum("bsd,df->bsf", x, W_gate)
        up = torch.einsum("bsd,df->bsf", x, W_up)
        gate = gate * (lambda x, dt: x.to(dt))(gate > 0, gate.dtype)
        h = gate * up
        return torch.einsum("bsf,fd->bsd", h, W_down)

    x = A_x
    h = x + _A_ref(_layernorm(x, axis=-1), A_wqkv, A_wo)
    h2 = h + _B_ref(_layernorm(h, axis=-1), B_W_gate, B_W_up, B_W_down)
    return h2
```

```python
S, D, H, DH, F = 2048, 512, 32, 16, 1792

KA_X, KA_WQKV, KA_WO, KA_BX, KA_WG, KA_WU, KA_WD, KA_OUT, KA_DBG, KA_WS = [8 * i for i in range(10)]

WS_QKV = 0
WS_O   = 0x600000
WS_H   = 0x800000
WS_HM  = 0xA00000
WS_ST  = WS_HM + 64 * 112 * 1024
WS_CS  = WS_ST + 2048 * 128
WS_END = WS_CS + 16384

SCALE_Q = 0.25 * 1.4426950408889634

import struct
def f32bits(x):
    return struct.unpack("<I", struct.pack("<f", x))[0]

def srd(a, dst, ptr, nbytes, add=0):
    if add:
        a(f"s_add_u32 s{dst}, s{ptr}, {add}")
        a(f"s_addc_u32 s{dst+1}, s{ptr+1}, 0")
    else:
        a(f"s_mov_b32 s{dst}, s{ptr}")
        a(f"s_mov_b32 s{dst+1}, s{ptr+1}")
    a(f"s_and_b32 s{dst+1}, s{dst+1}, 0xffff")
    a(f"s_mov_b32 s{dst+2}, {nbytes}")
    a(f"s_mov_b32 s{dst+3}, 0x00020000")

def kernel_header(name):
    return f""".globl {name}
.p2align 8
.type {name},@function
{name}:
"""

def kernel_desc(name, nvgpr, nsgpr, accum):
    return f""".section .rodata,"a"
.p2align 6
.amdhsa_kernel {name}
  .amdhsa_next_free_vgpr {nvgpr}
  .amdhsa_next_free_sgpr {nsgpr}
  .amdhsa_accum_offset {accum}
  .amdhsa_group_segment_fixed_size 0
  .amdhsa_kernarg_size 80
  .amdhsa_user_sgpr_count 2
  .amdhsa_user_sgpr_kernarg_segment_ptr 1
  .amdhsa_system_sgpr_workgroup_id_x 1
.end_amdhsa_kernel
.text
"""

import os
STAMPS = bool(int(os.environ.get("STAMPS", "0")))
STAMP_BASE = 64
class Stamper:
    def __init__(self, a, enabled=STAMPS):
        self.a = a; self.n = 0; self.en = enabled
    def __call__(self, label=""):
        if not self.en: return
        a = self.a
        a.comment("stamp %d %s" % (self.n, label))
        a.wait_lg(0)
        a(f"s_memrealtime s[{STAMP_BASE+2*self.n}:{STAMP_BASE+2*self.n+1}]")
        if self.n == 0: a("s_memtime s[96:97]")
        a._waitcnt(lg=0)
        self.n += 1
    def dump(self, wgs, s_wave, vtmp):
        if not self.en: return
        a = self.a
        a(f"s_load_dwordx2 s[100:101], s[0:1], {KA_DBG}")
        a("s_memtime s[98:99]")
        a.wait_lg(0)
        a("s_sub_u32 s98, s98, s96")
        self.ndump = getattr(self, "ndump", 0) + 1
        for i, wg in enumerate(wgs):
            wv = 0
            if isinstance(wg, tuple): wg, wv = wg
            lab = "L_stamp_%d_%d_%d" % (id(self) % 100000, self.ndump, i)
            a(f"s_cmp_lg_u32 s2, {wg}")
            a(f"s_cbranch_scc1 {lab}")
            a(f"s_cmp_lg_u32 s{s_wave}, {wv}")
            a(f"s_cbranch_scc1 {lab}")
            for k in range(self.n):
                a(f"v_mov_b32 v{vtmp}, s{STAMP_BASE+2*k}")
                a(f"v_mov_b32 v{vtmp+1}, {(16*i+k)*4}")
                a(f"global_store_dword v{vtmp+1}, v{vtmp}, s[100:101]")
            a(f"v_mov_b32 v{vtmp}, s98")
            a(f"v_mov_b32 v{vtmp+1}, {(16*i+15)*4}")
            a(f"global_store_dword v{vtmp+1}, v{vtmp}, s[100:101]")
            a.wait_vm(0)
            a.label(lab)

def l2_prefetch16(a, srd_base, vlane, vaddr, vtmp, vdst, s_off, row_stride, jlist):
    a(f"v_and_b32 v{vaddr}, 15, v{vlane}")
    a(f"v_mul_u32_u24 v{vaddr}, {row_stride}, v{vaddr}")
    a(f"v_lshrrev_b32 v{vtmp}, 4, v{vlane}")
    a(f"v_lshl_add_u32 v{vaddr}, v{vtmp}, 7, v{vaddr}")
    for j in jlist:
        a(f"buffer_load_dword v{vdst}, v{vaddr}, s[{srd_base}:{srd_base+3}], s{s_off} offen offset:{j*512}")
```

```python
import sys, importlib
from common import *

HEADER = """; Kernarg layout for this problem (80 bytes, ptrs only, base s[0:1]):
"""

def build(kernels):
    head = HEADER
    body = '.amdgcn_target "amdgcn-amd-amdhsa--gfx950"\n.text\n'
    descs = ""
    for mod, grid, block, lds in kernels:
        m = importlib.import_module(mod)
        text, nv, ns, accum = m.gen_full()
        head += f"; @launch kernel={m.NAME} grid=({grid},1,1) block=({block},1,1) lds={lds}\n"
        body += text + "\n"
        body += kernel_desc(m.NAME, nv, ns, accum)
    return head + body

if __name__ == "__main__":
    import klist
    out = sys.argv[1] if len(sys.argv) > 1 else "sequential_preLN__softmax_full_mha__glu_gated_reglu__prompt.s"
    open(out, "w").write(build(klist.KERNELS))
    print("wrote", out)
```

```python
import re

TRANS = ("v_exp_f32","v_log_f32","v_rcp_f32","v_rsq_f32","v_sqrt_f32","v_sin_f32","v_cos_f32",
         "v_exp_f16","v_log_f16","v_rcp_f16","v_rsq_f16","v_sqrt_f16","v_rcp_iflag_f32")

def mfma_passes(m):
    if "32x32x16" in m or "32x32x8" in m: return 8
    if "16x16x32" in m or "16x16x16" in m: return 4
    raise ValueError("unknown mfma " + m)

_reg_re = re.compile(r"^(-)?(\|)?([vsa])(\d+)(\|)?$")
_rng_re = re.compile(r"^([vsa])\[(\d+):(\d+)\]$")

def parse_operand(op):
    op = op.strip()
    m = _reg_re.match(op)
    if m: return [(m.group(3), int(m.group(4)))]
    m = _rng_re.match(op)
    if m: return [(m.group(1), i) for i in range(int(m.group(2)), int(m.group(3)) + 1)]
    if op == "vcc": return [("s", 106), ("s", 107)]
    if op == "vcc_lo": return [("s", 106)]
    if op == "vcc_hi": return [("s", 107)]
    if op == "exec": return [("exec", 0)]
    if op == "m0": return [("m0", 0)]
    return []

def split_ops(s):
    s = s.strip()
    out, depth, cur = [], 0, ""
    for ch in s:
        if ch == "[": depth += 1
        if ch == "]": depth -= 1
        if ch == "," and depth == 0:
            out.append(cur.strip()); cur = ""
        else:
            cur += ch
    if cur.strip(): out.append(cur.strip())
    mods = []
    if out:
        last = out[-1].split()
        out[-1] = last[0]
        mods = last[1:]
    return out, mods

class Ins:
    __slots__ = ("text","mn","ops","mods","cls","rd","wr","passes","srcC","dst_regs","nstates","is_wide_store","store_data","tag","mem")
    def __repr__(self): return self.text

def classify(text):
    t = text.split(";")[0].strip()
    sp = t.split(None, 1)
    mn = sp[0]
    rest = sp[1] if len(sp) > 1 else ""
    ops, mods = split_ops(rest)
    I = Ins()
    I.text = t; I.mn = mn; I.ops = ops; I.mods = mods
    I.rd = []; I.wr = []; I.passes = 0; I.srcC = []; I.nstates = 1
    I.is_wide_store = False; I.store_data = []; I.tag = None; I.mem = None
    P = [parse_operand(o) for o in ops]
    base = mn.replace("_e32", "").replace("_e64", "")
    if mn == "s_nop":
        I.cls = "nop"; I.nstates = int(ops[0], 0) + 1
    elif mn.startswith("v_mfma"):
        I.cls = "mfma"; I.passes = mfma_passes(mn)
        I.wr = P[0]; I.rd = P[1] + P[2] + P[3]; I.srcC = P[3]
    elif mn.startswith("v_"):
        I.cls = "trans" if base in TRANS else "valu"
        if base.startswith("v_cmp"):
            I.wr = P[0]; I.rd = sum(P[1:], [])
        elif base in ("v_readfirstlane_b32", "v_readlane_b32"):
            I.wr = P[0]; I.rd = sum(P[1:], [])
        elif base.startswith("v_permlane") and "swap" in base:
            I.wr = P[0] + P[1]; I.rd = P[0] + P[1]
        elif base in ("v_add_co_u32","v_sub_co_u32","v_subrev_co_u32"):
            I.wr = P[0] + P[1]; I.rd = sum(P[2:], [])
        elif base in ("v_addc_co_u32","v_subb_co_u32","v_subbrev_co_u32"):
            I.wr = P[0] + P[1]; I.rd = sum(P[2:], [])
        elif base in ("v_fmac_f32","v_dot2c_f32_bf16","v_fmac_f64","v_pk_fmac_f16","v_writelane_b32"):
            I.wr = P[0]; I.rd = P[0] + sum(P[1:], [])
        elif base == "v_nop":
            pass
        else:
            I.wr = P[0]; I.rd = sum(P[1:], [])
            if "sdwa" in mn and any("UNUSED_PRESERVE" in m for m in mods):
                I.rd = I.rd + P[0]
        if base == "v_cndmask_b32" and len(ops) == 3:
            I.rd = I.rd + parse_operand("vcc")
    elif mn.startswith("s_load") or mn.startswith("s_buffer_load"):
        I.cls = "smem"; I.wr = P[0]; I.rd = sum(P[1:], [])
    elif mn in ("s_memtime", "s_memrealtime"):
        I.cls = "smem"; I.wr = P[0]
    elif mn.startswith("s_"):
        I.cls = "salu"
        if mn.startswith("s_cmp") or mn.startswith("s_bitcmp"):
            I.rd = sum(P, [])
        elif mn in ("s_waitcnt","s_barrier","s_endpgm","s_branch","s_setprio","s_sleep","s_sethalt") or mn.startswith("s_cbranch"):
            pass
        elif "saveexec" in mn:
            I.wr = P[0] + [("exec", 0)]; I.rd = sum(P[1:], []) + [("exec", 0)]
        else:
            I.wr = P[0]; I.rd = sum(P[1:], [])
    elif mn.startswith("buffer_"):
        I.cls = "vmem"
        lds = "lds" in mods
        if mn.startswith("buffer_load"):
            if lds:
                I.rd = sum(P, []) + [("m0", 0)]
            else:
                I.wr = P[0]; I.rd = sum(P[1:], [])
        elif mn.startswith("buffer_store"):
            I.rd = sum(P, []); I.store_data = P[0]
            I.is_wide_store = ("x3" in mn or "x4" in mn)
        else:
            raise ValueError("unhandled " + text)
    elif mn.startswith("global_"):
        I.cls = "vmem"
        if "load_lds" in mn:
            I.rd = sum(P, []) + [("m0", 0)]
        elif mn.startswith("global_load"):
            I.wr = P[0]; I.rd = sum(P[1:], [])
        elif mn.startswith("global_store"):
            I.rd = sum(P, []); I.store_data = P[1]
            I.is_wide_store = ("x3" in mn or "x4" in mn)
        else:
            raise ValueError("unhandled " + text)
    elif mn.startswith("ds_"):
        I.cls = "ds"
        if mn.startswith("ds_read") or mn.startswith("ds_bpermute") or mn.startswith("ds_permute") or mn.startswith("ds_swizzle"):
            I.wr = P[0]; I.rd = sum(P[1:], [])
        elif mn.startswith("ds_write"):
            I.rd = sum(P, [])
        else:
            raise ValueError("unhandled " + text)
    else:
        raise ValueError("unhandled instruction: " + text)
    return I

def is_vg(r): return r[0] in ("v", "a")

class Asm:
    HIST = 28
    def __init__(self):
        self.out = []
        self.hist = []
        self.vm = []
        self.lg = []
        self.smem_pending = []
        self.loops = []
        self.auto_wait = True
        self.ntag = 0
        self.stats = {}
    def raw(self, text):
        self.out.append(text)
    def comment(self, text):
        self.out.append("    ; " + text)
    def _need(self, I, hist):
        need = 0
        dist = 0
        rdv = set(r for r in I.rd if is_vg(r)); wrv = set(r for r in I.wr if is_vg(r))
        rds = set(r for r in I.rd if r[0] == "s");
        for Pn in reversed(hist):
            req = 0
            pw = set(Pn.wr)
            pwv = set(r for r in pw if is_vg(r)); pws = set(r for r in pw if r[0] == "s")
            if Pn.cls in ("valu", "trans"):
                if I.cls == "mfma" and (pwv & rdv): req = max(req, 2)
                if I.cls == "vmem" and (pws & rds): req = max(req, 5)
                if I.cls in ("valu", "trans") and (pws & rds): req = max(req, 2)
                if I.mn.startswith(("v_readfirstlane", "v_readlane")) and (pwv & rdv): req = max(req, 1)
                if I.cls in ("salu", "smem") and (pws & rds): req = max(req, 4)
                if I.mn.startswith(("v_readlane", "v_writelane")) and (pws & rds): req = max(req, 4)
                if Pn.cls == "trans" and I.cls == "valu" and (pwv & (rdv | wrv)): req = max(req, 1)
                if I.mn.startswith("v_permlane") and (pwv & rdv): req = max(req, 2)
                if ("dpp" in I.mn or any(m.startswith(("row_", "quad_perm", "wave_")) for m in I.mods)) and (pwv & rdv): req = max(req, 2)
                if ("sdwa" in Pn.mn) and I.cls in ("valu", "trans") and (pwv & (rdv | wrv)): req = max(req, 1)
                if ("exec", 0) in pw and I.cls == "mfma": req = max(req, 4)
            if Pn.mn.startswith("v_dot"):
                if pwv & (rdv | wrv):
                    same = (I.mn == Pn.mn)
                    srcc_only = False
                    if same:
                        if "dot2c" in I.mn:
                            ab = set(sum([parse_operand(o) for o in I.ops[1:3]], []))
                        else:
                            ab = set(sum([parse_operand(o) for o in I.ops[1:3]], []))
                        srcc_only = not (pwv & ab)
                    if not (same and srcc_only): req = max(req, 3)
            if Pn.cls == "mfma":
                n = Pn.passes
                tbl_valu = {2:5, 4:8, 8:12, 16:20}[n]
                tbl_ab   = {2:5, 4:8, 8:12, 16:20}[n]
                tbl_cov  = {2:4, 4:6, 8:10, 16:18}[n]
                tbl_war  = {2:1, 4:3, 8:7, 16:15}[n]
                if I.cls == "mfma":
                    a_b = set(I.rd[:len(I.rd) - len(I.srcC)]) if I.srcC else set(I.rd)
                    if pwv & a_b: req = max(req, tbl_ab)
                    sc = set(I.srcC)
                    if pwv & sc:
                        if sc == pwv and I.passes == n:
                            req = max(req, 2 if n == 2 else 0)
                        else:
                            req = max(req, tbl_cov)
                    if (pwv & wrv) and not (pwv & sc): req = max(req, tbl_cov)
                else:
                    if pwv & (rdv | wrv): req = max(req, tbl_valu)
                    if I.cls in ("valu", "trans") and (set(Pn.srcC) & wrv): req = max(req, tbl_war)
            if Pn.cls == "vmem" and Pn.is_wide_store:
                sd = set(Pn.store_data)
                if sd & wrv:
                    req = max(req, 2 if I.cls in ("valu", "trans") else 1)
            if Pn.cls == "salu" and ("m0", 0) in pw:
                if I.cls == "vmem" and ("m0", 0) in I.rd: req = max(req, 1)
            if req > dist: need = max(need, req - dist)
            dist += Pn.nstates
            if dist > 24: break
        return need

    def _pad(self, n):
        while n > 0:
            k = min(n, 16)
            self._append(classify("s_nop %d" % (k - 1)))
            n -= k

    def _append(self, I):
        self.out.append("    " + I.text)
        self.hist.append(I)
        if len(self.hist) > self.HIST: self.hist.pop(0)
        self.stats[I.cls] = self.stats.get(I.cls, 0) + 1

    def _waitcnt(self, vm=None, lg=None):
        parts = []
        if vm is not None:
            parts.append("vmcnt(%d)" % vm);
        if lg is not None:
            parts.append("lgkmcnt(%d)" % lg)
        self._append(classify("s_waitcnt " + " ".join(parts)))
        if vm is not None:
            del self.vm[:len(self.vm) - vm]
        if lg is not None:
            del self.lg[:len(self.lg) - lg]
            if lg == 0: self.smem_pending = []

    def _auto_wait(self, I):
        touched = set(I.rd) | set(I.wr)
        vmn = lgn = None
        for i, o in enumerate(self.vm):
            if o["wr"] & touched:
                vmn = len(self.vm) - 1 - i if vmn is None else min(vmn, len(self.vm) - 1 - i)
        for i, o in enumerate(self.lg):
            if o["wr"] & touched:
                lgn = len(self.lg) - 1 - i if lgn is None else min(lgn, len(self.lg) - 1 - i)
        if self.smem_pending and (set(self.smem_pending) & touched):
            lgn = 0
        if vmn is not None or lgn is not None:
            self._waitcnt(vmn, lgn)

    def wait_tag(self, tag):
        for i, o in enumerate(self.vm):
            if o["tag"] == tag:
                self._waitcnt(vm=len(self.vm) - 1 - i); return
    def wait_lds_tag(self, tag):
        for i, o in enumerate(self.lg):
            if o["tag"] == tag:
                self._waitcnt(lg=len(self.lg) - 1 - i); return
    def wait_vm(self, n):
        if len(self.vm) > n: self._waitcnt(vm=n)
    def wait_lg(self, n=0):
        if len(self.lg) > n or (n == 0 and self.smem_pending): self._waitcnt(lg=n)

    def __call__(self, text, tag=None):
        for line in text.strip().split("\n"):
            line = line.strip()
            if not line or line.startswith(";"): continue
            self.emit1(line, tag)
        return tag

    def emit1(self, text, tag=None):
        I = classify(text)
        for m in I.mods:
            if m.startswith("offset:"):
                v = int(m[7:], 0)
                if I.mn.startswith("buffer_"): assert 0 <= v <= 4095, "MUBUF offset out of range: " + text
                elif I.mn.startswith("global_"): assert -4096 <= v <= 4095, "global offset out of range: " + text
                elif I.mn.startswith("ds_"): assert 0 <= v <= 65535, "DS offset out of range: " + text
        if I.cls == "nop":
            self._append(I); return
        if self.auto_wait and I.cls != "nop":
            self._auto_wait(I)
        n = self._need(I, self.hist)
        if n: self._pad(n)
        self._append(I)
        if I.cls == "vmem":
            self.vm.append({"tag": tag, "wr": set(I.wr)})
            assert len(self.vm) <= 63, "vmcnt overflow"
        elif I.cls == "ds":
            self.lg.append({"tag": tag, "wr": set(I.wr)})
            if len(self.lg) > 15:
                pass
        elif I.cls == "smem":
            self.smem_pending += I.wr

    def barrier(self):
        self.wait_lg(0)
        self("s_barrier")

    def flush_hazards(self):
        need = 0; dist = 0
        for Pn in reversed(self.hist):
            req = 0
            if Pn.cls == "mfma": req = {2:5, 4:8, 8:12, 16:20}[Pn.passes]
            elif Pn.cls in ("valu", "trans"): req = 5 if any(r[0] == "s" for r in Pn.wr) else 2
            elif Pn.cls == "vmem" and Pn.is_wide_store: req = 2
            if req > dist: need = max(need, req - dist)
            dist += Pn.nstates
        if need: self._pad(need)

    def label(self, name):
        self.out.append(name + ":")

    def mem_state(self):
        return ([(o["tag"], tuple(sorted(o["wr"]))) for o in self.vm], [(o["tag"], tuple(sorted(o["wr"]))) for o in self.lg])

    def loop_begin(self, name):
        self.label(name)
        self.loops.append((name, len(self.out), self.mem_state(), []))
        self._loop_ins_start = None
        self.hist_at_loop = list(self.hist)
        self.loop_first = []
        self._collect = self.loop_first

    def loop_end(self, branch_text):
        name, pos, st0, _ = self.loops.pop()
        st1 = self.mem_state()
        assert st0 == st1, "memory-op state not loop invariant:\n%r\n%r" % (st0, st1)
        head = []
        for line in self.out[pos:]:
            l = line.strip()
            if not l or l.startswith(";") or l.endswith(":"): continue
            head.append(classify(l))
            if len(head) >= self.HIST: break
        br = classify(branch_text)
        extra = 0
        while True:
            h = list(self.hist) + ([classify("s_nop %d" % (extra - 1))] if extra else []) + [br]
            worst = 0
            for I in head:
                n = self._need(I, h)
                worst = max(worst, n)
                h = h + [I]
            if worst == 0: break
            extra += worst
        if extra: self._pad(extra)
        self(branch_text)

    def text(self):
        return "\n".join(self.out) + "\n"

def vr(base, n=1):
    return "v%d" % base if n == 1 else "v[%d:%d]" % (base, base + n - 1)
def ar(base, n=1):
    return "a%d" % base if n == 1 else "a[%d:%d]" % (base, base + n - 1)
def sr(base, n=1):
    return "s%d" % base if n == 1 else "s[%d:%d]" % (base, base + n - 1)

class RegAlloc:
    def __init__(self, first, limit, pfx="v"):
        self.next = first; self.limit = limit; self.pfx = pfx; self.names = {}
    def alloc(self, n=1, align=1, name=None):
        b = (self.next + align - 1) // align * align
        assert b + n <= self.limit, "out of registers (%s) at %s" % (self.pfx, name)
        self.next = b + n
        if name: self.names[name] = (b, n)
        return b
    @property
    def high(self): return self.next
```

```python
from asmgen import *
from common import *

NAME = "k1_lnqkv_kernel"
LDS_BYTES = 512 * 192

def wg_decode_16x16(a, s_wg, s_rb, s_cb, t0, t1):
    a(f"s_and_b32 s{t0}, s{s_wg}, 7")
    a(f"s_lshr_b32 s{t1}, s{s_wg}, 3")
    a(f"s_and_b32 s{s_rb}, s{t0}, 3")
    a(f"s_lshl_b32 s{s_rb}, s{s_rb}, 2")
    a(f"s_and_b32 s{s_cb}, s{t1}, 3")
    a(f"s_add_u32 s{s_rb}, s{s_rb}, s{s_cb}")
    a(f"s_lshr_b32 s{s_cb}, s{t0}, 2")
    a(f"s_lshl_b32 s{s_cb}, s{s_cb}, 3")
    a(f"s_lshr_b32 s{t1}, s{t1}, 2")
    a(f"s_add_u32 s{s_cb}, s{s_cb}, s{t1}")

def cross_half_sum(a, v, t0, t1):
    a(f"v_mov_b32 v{t0}, v{v}")
    a(f"v_mov_b32 v{t1}, v{v}")
    a(f"v_permlane32_swap_b32 v{t0}, v{t1}")
    a(f"v_add_f32 v{v}, v{t0}, v{t1}")

def round_bf16(a, dst, src, tmp):
    a(f"v_cvt_pk_bf16_f32 v{tmp}, v{src}, v{src}")
    a(f"v_and_b32 v{dst}, 0xffff0000, v{tmp}")

def gen():
    a = Asm()
    R = RegAlloc(1, 256)
    a.raw(kernel_header(NAME))
    sX, sW, sWS = 4, 6, 8
    srdX, srdW, srdO = 12, 16, 20
    sRb, sCb, sWave, sT0, sT1, sWb, sM0b, sOff, sTok = 24, 25, 26, 27, 28, 29, 30, 31, 32
    sSc = 33
    sHs = 36
    st = Stamper(a)
    st("start")
    a("s_cmp_ge_u32 s2, 256")
    a("s_cbranch_scc1 L_k1_end")
    a(f"s_load_dwordx2 s[{sX}:{sX+1}], s[0:1], {KA_X}")
    a(f"s_load_dwordx2 s[{sW}:{sW+1}], s[0:1], {KA_WQKV}")
    a(f"s_load_dwordx2 s[{sWS}:{sWS+1}], s[0:1], {KA_WS}")
    vLane = R.alloc(); vT = R.alloc(); vT2 = R.alloc(); vHalf = R.alloc(); vTok = R.alloc()
    vXoff = R.alloc(); vWo = [R.alloc() for _ in range(3)]
    a(f"v_and_b32 v{vLane}, 63, v0")
    a(f"v_lshrrev_b32 v{vT}, 6, v0")
    a(f"v_readfirstlane_b32 s{sWave}, v{vT}")
    wg_decode_16x16(a, 2, sRb, sCb, sT0, sT1)
    a(f"v_and_b32 v{vTok}, 31, v{vLane}")
    a(f"v_lshrrev_b32 v{vHalf}, 5, v{vLane}")
    a(f"s_lshl_b32 s{sTok}, s{sRb}, 7")
    a(f"s_lshl_b32 s{sT0}, s{sWave}, 5")
    a(f"s_add_u32 s{sTok}, s{sTok}, s{sT0}")
    a(f"v_add_u32 v{vTok}, s{sTok}, v{vTok}")
    a(f"v_lshlrev_b32 v{vXoff}, 10, v{vTok}")
    a(f"v_lshl_add_u32 v{vXoff}, v{vHalf}, 4, v{vXoff}")
    a.wait_lg(0)
    st("kernarg")
    srd(a, srdX, sX, S * D * 2)
    srd(a, srdW, sW, D * 3 * D * 2)
    srd(a, srdO, sWS, 96 * 65536, add=WS_QKV)
    XR = R.alloc(128, 4, "XR")
    for ks in range(32):
        a(f"buffer_load_dwordx4 {vr(XR+4*ks,4)}, v{vXoff}, s[{srdX}:{srdX+3}], 0 offen offset:{ks*32}")
    st("x issued")
    for p in range(3):
        for lane in range(64):
            u = p * 64 + lane
            assert (u * 171) >> 11 == u // 12
        a(f"v_add_u32 v{vT}, {64*p}, v{vLane}")
        a(f"v_mul_u32_u24 v{vT2}, 171, v{vT}")
        a(f"v_lshrrev_b32 v{vT2}, 11, v{vT2}")
        a(f"v_mul_u32_u24 v{vWo[p]}, 12, v{vT2}")
        a(f"v_sub_u32 v{vT}, v{vT}, v{vWo[p]}")
        a(f"v_mul_u32_u24 v{vWo[p]}, 3072, v{vT2}")
        a(f"v_lshl_add_u32 v{vWo[p]}, v{vT}, 4, v{vWo[p]}")
    a(f"s_mul_i32 s{sWb}, s{sCb}, 192")
    a(f"s_mul_i32 s{sT0}, s{sWave}, 49152")
    a(f"s_add_u32 s{sWb}, s{sWb}, s{sT0}")
    a(f"s_mul_i32 s{sM0b}, s{sWave}, 3072")
    for j in range(8):
        a(f"s_add_u32 s{sOff}, s{sWb}, {j*196608}")
        for p in range(3):
            a(f"s_add_u32 m0, s{sM0b}, {j*12288 + p*1024}")
            a(f"buffer_load_dwordx4 v{vWo[p]}, s[{srdW}:{srdW+3}], s{sOff} offen lds", tag=("W", j, p))
    vWa = [R.alloc(), R.alloc()]
    a(f"v_lshrrev_b32 v{vT}, 5, v{vLane}")
    a(f"v_lshlrev_b32 v{vT}, 3, v{vT}")
    a(f"v_bfe_u32 v{vT2}, v{vLane}, 2, 2")
    a(f"v_add_u32 v{vT}, v{vT}, v{vT2}")
    a(f"v_mul_u32_u24 v{vWa[0]}, 192, v{vT}")
    a(f"v_bfe_u32 v{vT}, v{vLane}, 4, 1")
    a(f"v_lshlrev_b32 v{vT}, 5, v{vT}")
    a(f"v_add_u32 v{vWa[0]}, v{vWa[0]}, v{vT}")
    a(f"v_and_b32 v{vT}, 3, v{vLane}")
    a(f"v_lshl_add_u32 v{vWa[0]}, v{vT}, 3, v{vWa[0]}")
    a(f"v_add_u32 v{vWa[1]}, 49152, v{vWa[0]}")
    vOnes = R.alloc(); vSelLo = R.alloc(); vSelHi = R.alloc()
    a(f"v_mov_b32 v{vOnes}, 0x3f803f80")
    a(f"v_mov_b32 v{vSelLo}, 0x3f80")
    a(f"v_mov_b32 v{vSelHi}, 0x3f800000")
    vAcc = R.alloc(4)
    st("issued")
    if st.en: a.wait_vm(24); st("x arrived")
    for j in range(4): a(f"v_mov_b32 v{vAcc+j}, 0")
    for ks in range(32):
        for j in range(4):
            a(f"v_dot2_f32_bf16 v{vAcc+j}, v{XR+4*ks+j}, v{vOnes}, v{vAcc+j}")
    vMean = R.alloc(); vNegM = R.alloc(); vDelta = R.alloc()
    a(f"v_add_f32 v{vAcc}, v{vAcc}, v{vAcc+1}")
    a(f"v_add_f32 v{vAcc+2}, v{vAcc+2}, v{vAcc+3}")
    a(f"v_add_f32 v{vMean}, v{vAcc}, v{vAcc+2}")
    cross_half_sum(a, vMean, vT, vT2)
    a(f"v_mul_f32 v{vMean}, 0x3b000000, v{vMean}")
    round_bf16(a, vNegM, vMean, vT)
    a(f"v_sub_f32 v{vDelta}, v{vNegM}, v{vMean}")
    a(f"v_sub_f32 v{vNegM}, 0, v{vNegM}")
    ACC = [R.alloc(16, 4) for _ in range(3)]
    WF = [[R.alloc(4, 4) for _ in range(3)] for _ in range(2)]
    XC = [R.alloc(4, 4) for _ in range(2)]
    DT = [R.alloc(2, 2) for _ in range(4)]
    SQ = [R.alloc(2, 2) for _ in range(2)]
    for q in SQ:
        a(f"v_mov_b32 v{q}, 0"); a(f"v_mov_b32 v{q+1}, 0")

    def center(ks, j):
        x = XR + 4 * ks + j; d = DT[j]; buf = ks & 1
        a(f"v_dot2_f32_bf16 v{d}, v{x}, v{vSelLo}, v{vNegM}")
        a(f"v_dot2_f32_bf16 v{d+1}, v{x}, v{vSelHi}, v{vNegM}")
    def center2(ks, j):
        d = DT[j]; buf = ks & 1; q = SQ[j & 1]
        a(f"v_pk_fma_f32 v[{q}:{q+1}], v[{d}:{d+1}], v[{d}:{d+1}], v[{q}:{q+1}]")
        a(f"v_cvt_pk_bf16_f32 v{XC[buf]+j}, v{d}, v{d+1}")
    def wread(ks):
        buf = ks & 1
        base = vWa[ks // 16]; off = (ks % 16) * 3072
        for nb in range(3):
            w = WF[buf][nb]
            a(f"ds_read_b64_tr_b16 v[{w}:{w+1}], v{base} offset:{off + nb*64}")
            a(f"ds_read_b64_tr_b16 v[{w+2}:{w+3}], v{base} offset:{off + nb*64 + 768}")
    def stage(s):
        a.wait_tag(("W", 2 * s + 1, 2))
        a.barrier()

    st("mean done")
    stage(0)
    st("stage0")
    wread(0)
    for j in range(4):
        center(0, j); center2(0, j)
    for ks in range(32):
        buf = ks & 1
        nxt = ks + 1
        if nxt < 32:
            if nxt % 8 == 0:
                stage(nxt // 8); st("stage")
            wread(nxt)
        for nb in range(3):
            c = "0" if ks == 0 else vr(ACC[nb], 16)
            a(f"v_mfma_f32_32x32x16_bf16 {vr(ACC[nb],16)}, {vr(WF[buf][nb],4)}, {vr(XC[buf],4)}, {c}")
            if nxt < 32:
                if nb == 0:
                    center(nxt, 0); center(nxt, 1); center2(nxt, 0)
                elif nb == 1:
                    center(nxt, 2); center2(nxt, 1); center(nxt, 3)
                else:
                    center2(nxt, 2); center2(nxt, 3)
    st("kloop done")
    vVar = R.alloc(); vRs = R.alloc()
    a(f"v_add_f32 v{SQ[0]}, v{SQ[0]}, v{SQ[0]+1}")
    a(f"v_add_f32 v{SQ[1]}, v{SQ[1]}, v{SQ[1]+1}")
    a(f"v_add_f32 v{vVar}, v{SQ[0]}, v{SQ[1]}")
    cross_half_sum(a, vVar, vT, vT2)
    a(f"v_mul_f32 v{vVar}, 0x3b000000, v{vVar}")
    a(f"v_fma_f32 v{vVar}, -v{vDelta}, v{vDelta}, v{vVar}")
    a(f"v_max_f32 v{vVar}, 0, v{vVar}")
    round_bf16(a, vVar, vVar, vT)
    a(f"v_add_f32 v{vVar}, {f32bits(1e-5):#x}, v{vVar}")
    round_bf16(a, vVar, vVar, vT)
    a(f"v_sqrt_f32 v{vVar}, v{vVar}")
    round_bf16(a, vVar, vVar, vT)
    a(f"v_rcp_f32 v{vRs}, v{vVar}")
    a(f"s_mul_i32 s{sT0}, s{sCb}, 6")
    for nb in range(3):
        a(f"s_add_u32 s{sT1}, s{sT0}, {2*nb}")
        a(f"s_cmp_lt_u32 s{sT1}, 32")
        a(f"s_cselect_b32 s{sSc+nb}, {f32bits(SCALE_Q):#x}, 1.0")
        a(f"s_lshl_b32 s{sHs+2*nb}, s{sT1}, 16")
        a(f"s_add_u32 s{sHs+2*nb+1}, s{sHs+2*nb}, 65536")
    vSoff = R.alloc(); vF = R.alloc()
    a(f"v_lshlrev_b32 v{vSoff}, 5, v{vTok}")
    a(f"v_lshl_add_u32 v{vSoff}, v{vHalf}, 4, v{vSoff}")
    PK = XR
    for nb in range(3):
        a(f"v_mul_f32 v{vF}, s{sSc+nb}, v{vRs}")
        for i in range(16):
            a(f"v_mul_f32 v{ACC[nb]+i}, v{ACC[nb]+i}, v{vF}")
        for i in range(8):
            a(f"v_cvt_pk_bf16_f32 v{PK+8*nb+i}, v{ACC[nb]+2*i}, v{ACC[nb]+2*i+1}")
        for hh in range(2):
            a(f"buffer_store_dwordx4 {vr(PK+8*nb+4*hh,4)}, v{vSoff}, s[{srdO}:{srdO+3}], s{sHs+2*nb+hh} offen")
    a.wait_vm(0); st("end")
    st.dump([0, 100, 255], sWave, vT)
    nv = R.high
    a.label("L_k1_end")
    a("s_endpgm")
    return a.text(), nv

if __name__ == "__main__":
    t, nv = gen()
    print(t[:3000]); print(nv)

def gen_full():
    t, nv = gen()
    nv = (nv + 7) // 8 * 8
    return t, nv, 102 if STAMPS else 64, nv
```

```python
from asmgen import *
from common import *
from k1 import wg_decode_16x16, cross_half_sum, round_bf16

NAME = "k1_lnqkv_kernel"
W_BYTES = 512 * 192
EX_SUM = W_BYTES
EX_ACC = W_BYTES + 1024
LDS_BYTES = EX_ACC + 4 * 13 * 1024

def gen():
    a = Asm(); R = RegAlloc(1, 256); st = Stamper(a)
    a.raw(kernel_header(NAME))
    sX, sW, sWS = 4, 6, 8
    srdX, srdW, srdO = 12, 16, 20
    sRb, sCb, sWave, sT0, sT1, sWb, sM0b, sOff, sTok, sTbi, sKh = 24, 25, 26, 27, 28, 29, 30, 31, 32, 33, 34
    sSc = 36; sHs = 40
    st("start")
    a("s_cmp_ge_u32 s2, 256")
    a("s_cbranch_scc1 L_k1_end")
    a(f"s_load_dwordx2 s[{sX}:{sX+1}], s[0:1], {KA_X}")
    a(f"s_load_dwordx2 s[{sW}:{sW+1}], s[0:1], {KA_WQKV}")
    a(f"s_load_dwordx2 s[{sWS}:{sWS+1}], s[0:1], {KA_WS}")
    vLane = R.alloc(); vT = R.alloc(); vT2 = R.alloc(); vHalf = R.alloc(); vTok = R.alloc()
    vXoff = R.alloc(); vWo = [R.alloc() for _ in range(3)]
    a(f"v_and_b32 v{vLane}, 63, v0")
    a(f"v_lshrrev_b32 v{vT}, 6, v0")
    a(f"v_readfirstlane_b32 s{sWave}, v{vT}")
    wg_decode_16x16(a, 2, sRb, sCb, sT0, sT1)
    a(f"v_and_b32 v{vTok}, 31, v{vLane}")
    a(f"v_lshrrev_b32 v{vHalf}, 5, v{vLane}")
    a(f"s_and_b32 s{sTbi}, s{sWave}, 3"); a(f"s_lshr_b32 s{sKh}, s{sWave}, 2")
    a(f"s_lshl_b32 s{sTok}, s{sRb}, 7"); a(f"s_lshl_b32 s{sT0}, s{sTbi}, 5"); a(f"s_add_u32 s{sTok}, s{sTok}, s{sT0}")
    a(f"v_add_u32 v{vTok}, s{sTok}, v{vTok}")
    a(f"v_lshlrev_b32 v{vXoff}, 10, v{vTok}")
    a(f"v_lshl_add_u32 v{vXoff}, v{vHalf}, 4, v{vXoff}")
    a(f"s_lshl_b32 s{sOff}, s{sKh}, 9")
    a.wait_lg(0)
    srd(a, srdX, sX, S * D * 2)
    XR = R.alloc(64, 4, "XR")
    for j in range(16):
        a(f"buffer_load_dwordx4 {vr(XR+4*j,4)}, v{vXoff}, s[{srdX}:{srdX+3}], s{sOff} offen offset:{j*32}")
    srd(a, srdW, sW, D * 3 * D * 2)
    for p in range(3):
        a(f"v_add_u32 v{vT}, {64*p}, v{vLane}")
        a(f"v_mul_u32_u24 v{vT2}, 171, v{vT}")
        a(f"v_lshrrev_b32 v{vT2}, 11, v{vT2}")
        a(f"v_mul_u32_u24 v{vWo[p]}, 12, v{vT2}")
        a(f"v_sub_u32 v{vT}, v{vT}, v{vWo[p]}")
        a(f"v_mul_u32_u24 v{vWo[p]}, 3072, v{vT2}")
        a(f"v_lshl_add_u32 v{vWo[p]}, v{vT}, 4, v{vWo[p]}")
    a(f"s_lshl_b32 s{sT0}, s{sKh}, 4"); a(f"s_add_u32 s{sT0}, s{sT0}, s{sTbi}")
    a(f"s_mul_i32 s{sWb}, s{sT0}, 49152"); a(f"s_mul_i32 s{sT1}, s{sCb}, 192"); a(f"s_add_u32 s{sWb}, s{sWb}, s{sT1}")
    a(f"s_mul_i32 s{sM0b}, s{sT0}, 3072")
    for s_ in range(4):
        a(f"s_add_u32 s{sOff}, s{sWb}, {s_*4*49152}")
        for p in range(3):
            a(f"s_add_u32 m0, s{sM0b}, {s_*4*3072 + p*1024}")
            a(f"buffer_load_dwordx4 v{vWo[p]}, s[{srdW}:{srdW+3}], s{sOff} offen lds", tag=("W", s_, p))
    st("issued")
    vWa = R.alloc()
    a(f"v_lshrrev_b32 v{vT}, 5, v{vLane}"); a(f"v_lshlrev_b32 v{vT}, 3, v{vT}")
    a(f"v_bfe_u32 v{vT2}, v{vLane}, 2, 2"); a(f"v_add_u32 v{vT}, v{vT}, v{vT2}")
    a(f"v_mul_u32_u24 v{vWa}, 192, v{vT}")
    a(f"v_bfe_u32 v{vT}, v{vLane}, 4, 1"); a(f"v_lshlrev_b32 v{vT}, 5, v{vT}"); a(f"v_add_u32 v{vWa}, v{vWa}, v{vT}")
    a(f"v_and_b32 v{vT}, 3, v{vLane}"); a(f"v_lshl_add_u32 v{vWa}, v{vT}, 3, v{vWa}")
    a(f"s_mul_i32 s{sT0}, s{sKh}, 49152"); a(f"v_add_u32 v{vWa}, s{sT0}, v{vWa}")
    vOnes = R.alloc(); vAcc = R.alloc(4)
    a(f"v_mov_b32 v{vOnes}, 0x3f803f80")
    for j in range(4): a(f"v_mov_b32 v{vAcc+j}, 0")
    for j in range(16):
        for q in range(4):
            a(f"v_dot2_f32_bf16 v{vAcc+q}, v{XR+4*j+q}, v{vOnes}, v{vAcc+q}")
    vMean = R.alloc(); vNegM = R.alloc(); vDelta = R.alloc(); vEx = R.alloc()
    a(f"v_add_f32 v{vAcc}, v{vAcc}, v{vAcc+1}"); a(f"v_add_f32 v{vAcc+2}, v{vAcc+2}, v{vAcc+3}")
    a(f"v_add_f32 v{vMean}, v{vAcc}, v{vAcc+2}")
    cross_half_sum(a, vMean, vT, vT2)
    a(f"v_and_b32 v{vT}, 31, v{vLane}"); a(f"v_lshlrev_b32 v{vEx}, 2, v{vT}")
    a(f"s_lshl_b32 s{sT0}, s{sWave}, 7"); a(f"s_add_u32 s{sT0}, s{sT0}, {EX_SUM}")
    a(f"v_add_u32 v{vT}, s{sT0}, v{vEx}")
    a(f"ds_write_b32 v{vT}, v{vMean}")
    st("sums")
    a.wait_tag(("W", 0, 2))
    a.barrier()
    st("stage0")
    a(f"s_xor_b32 s{sT0}, s{sWave}, 4"); a(f"s_lshl_b32 s{sT0}, s{sT0}, 7"); a(f"s_add_u32 s{sT0}, s{sT0}, {EX_SUM}")
    a(f"v_add_u32 v{vT}, s{sT0}, v{vEx}")
    a(f"ds_read_b32 v{vT2}, v{vT}")
    a(f"v_add_f32 v{vMean}, v{vMean}, v{vT2}")
    a(f"v_mul_f32 v{vMean}, 0x3b000000, v{vMean}")
    round_bf16(a, vNegM, vMean, vT)
    a(f"v_sub_f32 v{vDelta}, v{vNegM}, v{vMean}")
    a(f"v_sub_f32 v{vNegM}, 0, v{vNegM}")
    ACC = [R.alloc(16, 4) for _ in range(3)]
    WF = [[R.alloc(4, 4) for _ in range(3)] for _ in range(2)]
    DT = [R.alloc(2, 2) for _ in range(4)]
    SQ = R.alloc(4, 4)
    for q in range(2): a(f"v_mov_b32 v{SQ+q}, 0")
    def center_ops(j):
        ops = []
        for q in range(4):
            x = XR + 4 * j + q; d = DT[q]
            ops += [f"v_lshlrev_b32 v{d}, 16, v{x}", f"v_and_b32 v{d+1}, 0xffff0000, v{x}",
                    f"v_add_f32 v{d}, v{d}, v{vNegM}", f"v_add_f32 v{d+1}, v{d+1}, v{vNegM}",
                    f"v_fmac_f32 v{SQ}, v{d}, v{d}", f"v_fmac_f32 v{SQ+1}, v{d+1}, v{d+1}",
                    f"v_cvt_pk_bf16_f32 v{x}, v{d}, v{d+1}"]
        return ops
    def wread(j):
        buf = j & 1
        for nb in range(3):
            w = WF[buf][nb]
            a(f"ds_read_b64_tr_b16 v[{w}:{w+1}], v{vWa} offset:{j*3072 + nb*64}")
            a(f"ds_read_b64_tr_b16 v[{w+2}:{w+3}], v{vWa} offset:{j*3072 + nb*64 + 768}")
    wread(0)
    for op in center_ops(0): a(op)
    for j in range(16):
        buf = j & 1; nxt = j + 1
        if nxt < 16:
            if nxt % 4 == 0:
                a.wait_tag(("W", nxt // 4, 2)); a.barrier(); st("stage")
            wread(nxt)
        ops = center_ops(nxt) if nxt < 16 else []
        for nb in range(3):
            c = "0" if j == 0 else vr(ACC[nb], 16)
            a(f"v_mfma_f32_32x32x16_bf16 {vr(ACC[nb],16)}, {vr(WF[buf][nb],4)}, {vr(XR+4*j,4)}, {c}")
            lo, hi = (0, 10) if nb == 0 else ((10, 19) if nb == 1 else (19, 28))
            for op in ops[lo:hi]: a(op)
    st("kloop done")
    vVar = R.alloc(); vRs = R.alloc(); vCb = R.alloc()
    a(f"v_add_f32 v{SQ}, v{SQ}, v{SQ+1}")
    cross_half_sum(a, SQ, vT, vT2)
    a(f"v_lshlrev_b32 v{vCb}, 4, v{vLane}")
    a(f"s_mul_i32 s{sT0}, s{sTbi}, {13*1024}"); a(f"s_add_u32 s{sT0}, s{sT0}, {EX_ACC}")
    a(f"v_add_u32 v{vCb}, s{sT0}, v{vCb}")
    a.flush_hazards()
    a(f"s_cmp_eq_u32 s{sKh}, 0")
    a("s_cbranch_scc1 L_k1_comb0")
    for nb in range(3):
        for g in range(4):
            a(f"ds_write_b128 v{vCb}, {vr(ACC[nb]+4*g,4)} offset:{(nb*4+g)*1024}")
    a(f"ds_write_b128 v{vCb}, {vr(SQ,4)} offset:{12*1024}")
    a.barrier()
    a("s_branch L_k1_end")
    a.label("L_k1_comb0")
    a.barrier()
    T = XR
    for nb in range(3):
        for g in range(4):
            a(f"ds_read_b128 {vr(T+16*nb+4*g,4)}, v{vCb} offset:{(nb*4+g)*1024}")
    a(f"ds_read_b128 {vr(T+48,4)}, v{vCb} offset:{12*1024}")
    for nb in range(3):
        for i in range(16):
            a(f"v_add_f32 v{ACC[nb]+i}, v{ACC[nb]+i}, v{T+16*nb+i}")
    a(f"v_add_f32 v{vVar}, v{SQ}, v{T+48}")
    a(f"v_mul_f32 v{vVar}, 0x3b000000, v{vVar}")
    a(f"v_fma_f32 v{vVar}, -v{vDelta}, v{vDelta}, v{vVar}")
    a(f"v_max_f32 v{vVar}, 0, v{vVar}")
    round_bf16(a, vVar, vVar, vT)
    a(f"v_add_f32 v{vVar}, {f32bits(1e-5):#x}, v{vVar}")
    round_bf16(a, vVar, vVar, vT)
    a(f"v_sqrt_f32 v{vVar}, v{vVar}")
    round_bf16(a, vVar, vVar, vT)
    a(f"v_rcp_f32 v{vRs}, v{vVar}")
    a(f"s_mul_i32 s{sT0}, s{sCb}, 6")
    for nb in range(3):
        a(f"s_add_u32 s{sT1}, s{sT0}, {2*nb}")
        a(f"s_cmp_lt_u32 s{sT1}, 32")
        a(f"s_cselect_b32 s{sSc+nb}, {f32bits(SCALE_Q):#x}, 1.0")
        a(f"s_lshl_b32 s{sHs+2*nb}, s{sT1}, 16")
        a(f"s_add_u32 s{sHs+2*nb+1}, s{sHs+2*nb}, 65536")
    vSoff = R.alloc(); vF = R.alloc()
    a(f"v_lshlrev_b32 v{vSoff}, 5, v{vTok}")
    a(f"v_lshl_add_u32 v{vSoff}, v{vHalf}, 4, v{vSoff}")
    srd(a, srdO, sWS, 96 * 65536, add=WS_QKV)
    PK = XR
    for nb in range(3):
        a(f"v_mul_f32 v{vF}, s{sSc+nb}, v{vRs}")
        for i in range(16):
            a(f"v_mul_f32 v{ACC[nb]+i}, v{ACC[nb]+i}, v{vF}")
        for i in range(8):
            a(f"v_cvt_pk_bf16_f32 v{PK+8*nb+i}, v{ACC[nb]+2*i}, v{ACC[nb]+2*i+1}")
        for hh in range(2):
            a(f"buffer_store_dwordx4 {vr(PK+8*nb+4*hh,4)}, v{vSoff}, s[{srdO}:{srdO+3}], s{sHs+2*nb+hh} offen")
    a.wait_vm(0)
    st("end")
    st.dump([0, 100, 255], sWave, vT)
    a.label("L_k1_end")
    a("s_endpgm")
    return a.text(), R.high

def gen_full():
    t, nv = gen()
    nv = (nv + 7) // 8 * 8
    return t, nv, 102 if STAMPS else 56, nv
if __name__ == "__main__":
    t, nv = gen(); print(nv, len(t.split("\n")))
```

```python
import k1b
KERNELS = [
    ("k1b", 256, 512, k1b.LDS_BYTES),
    ("k2", 256, 1024, 163840),
    ("k3", 256 + 56, 256, 4 * 8 * 2048),
    ("k4", 256, 256, 5 * 28928),
    ("k5", 256, 256, 4 * 14 * 2048),
]
```
